```python
import torch

def _softmax(x, axis=-1):
    return torch.softmax(x, dim=axis)
def _gelu(x):
    return torch.nn.functional.gelu(x, approximate="tanh")
def _silu(x):
    return torch.nn.functional.silu(x)
def _sigmoid(x):
    return torch.sigmoid(x)
def _layernorm(x, axis=-1, eps=1e-5):
    m = x.mean(dim=axis, keepdim=True)
    v = x.var(dim=axis, keepdim=True, unbiased=False)
    return (x - m) / torch.sqrt(v + eps)
def _scatter_add(tgt, idx, src, axis=0):
    return tgt.clone().index_add_(axis, idx, src)
def _segment_sum(src, seg, n):
    out = torch.zeros((n,) + src.shape[1:], dtype=src.dtype)
    return out.index_add_(0, seg, src)
def _pad(x, pw):
    flat = tuple(v for pair in reversed(pw) for v in pair)
    return torch.nn.functional.pad(x, flat)

kernel_name = 'gated_mix__ssm_conv_h3__grouped_kv_mqa__prompt'

def setup_inputs():

    _w = (lambda a: (lambda t: t.to(torch.bfloat16) if t.is_floating_point() else t)(torch.as_tensor(a)))
    def _A_setup():
        B, S, D = 1, 2048, 1024
        ks = 4
        return {
            "q": _w((lambda *s: torch.randn(*s, dtype=torch.bfloat16) * 0.05)(B, S, D)),
            "k": _w((lambda *s: torch.randn(*s, dtype=torch.bfloat16) * 0.4)(B, S, D)),
            "v": _w((lambda *s: torch.randn(*s, dtype=torch.bfloat16) * 0.4)(B, S, D)),
            "shift_k": _w((lambda *s: torch.randn(*s, dtype=torch.bfloat16) * 0.4)(D, ks) * 0.5),
            "ssm_k": _w((lambda *s: torch.randn(*s, dtype=torch.bfloat16) * 0.8)(D, S) * (1.0 / S ** 0.5)),
            "ssm_D": _w((lambda *s: torch.randn(*s, dtype=torch.bfloat16) * 0.4)(D)),
        }
    _A_in = _A_setup()

    def _B_setup():
        B, S, D, H = 1, 2048, 1024, 32
        Dh = D // H
        return {
            "x": _w((lambda *s: torch.randn(*s, dtype=torch.bfloat16) * 0.05)(B, S, D)),
            "wq": _w((lambda *s: torch.randn(*s, dtype=torch.bfloat16) * 0.8)(D, H * Dh)),
            "wk": _w((lambda *s: torch.randn(*s, dtype=torch.bfloat16) * 0.8)(D, Dh)),
            "wv": _w((lambda *s: torch.randn(*s, dtype=torch.bfloat16) * 0.05)(D, Dh)),
            "wo": _w((lambda *s: torch.randn(*s, dtype=torch.bfloat16) * 0.05)(H * Dh, D)),
        }
    _B_in = _B_setup()

    return {
        "A_q": _A_in["q"],
        "A_k": _A_in["k"],
        "A_v": _A_in["v"],
        "A_shift_k": _A_in["shift_k"],
        "A_ssm_k": _A_in["ssm_k"],
        "A_ssm_D": _A_in["ssm_D"],
        "B_x": _B_in["x"],
        "B_wq": _B_in["wq"],
        "B_wk": _B_in["wk"],
        "B_wv": _B_in["wv"],
        "B_wo": _B_in["wo"],
        "gate_w": _w((lambda *s: torch.randn(*s, dtype=torch.bfloat16) * 0.05)(1024) * 16.0),
    }

def reference(A_q, A_k, A_v, A_shift_k, A_ssm_k, A_ssm_D, B_x, B_wq, B_wk, B_wv, B_wo, gate_w):
    def _A_ref(q, k, v, shift_k, ssm_k, ssm_D):
        B, S, D = q.shape
        ks = shift_k.shape[-1]
        k_pad = _pad(k, ((0, 0), (ks - 1, 0), (0, 0)))
        k_shift = torch.zeros_like(k)
        for t in range(ks):
            k_shift = k_shift + k_pad[:, t:t + S, :] * shift_k[:, ks - 1 - t][None, None, :]
        kv = k_shift * v
        L = 2 * S
        kv_pad = _pad(kv, ((0, 0), (0, S), (0, 0)))
        kf_pad = _pad(ssm_k, ((0, 0), (0, S)))
        kv_f = (lambda x, axes=(-2,-1): torch.fft.rfft2(x.float(), dim=axes))(kv_pad[:, None, :, :], axes=(1, 2))
        kf_f = (lambda x, axes=(-2,-1): torch.fft.rfft2(x.float(), dim=axes))(kf_pad[:, None, :], axes=(1, 2))
        kf_f = (lambda x, *d: x.permute(*d))(kf_f, 1, 2, 0)
        y_f = kv_f * kf_f[None, :, :, :]
        y = (lambda x, s, axes=(-2,-1): torch.fft.irfft2(x, s=s, dim=axes).to(torch.bfloat16))(y_f, (1, L), axes=(1, 2))[:, 0, :S, :]
        y = y + kv * ssm_D[None, None, :]
        return q * y

    def _B_ref(x, wq, wk, wv, wo):
        B, S, D = x.shape
        H = 32
        Dh = D // H
        q = (lambda x, *d: x.permute(*d))((x @ wq).reshape(B, S, H, Dh), 0, 2, 1, 3)
        k = x @ wk
        v = x @ wv
        scores = torch.einsum("bhqd,bkd->bhqk", q, k) * (Dh ** -0.5)
        p = _softmax(scores, axis=-1)
        o = torch.einsum("bhqk,bkd->bhqd", p, v)
        return (lambda x, *d: x.permute(*d))(o, 0, 2, 1, 3).reshape(B, S, H * Dh) @ wo

    x = A_q
    g = _sigmoid((x * gate_w).sum(-1, keepdims=True))
    a = _A_ref(x, A_k, A_v, A_shift_k, A_ssm_k, A_ssm_D)
    b = _B_ref(x, B_wq, B_wk, B_wv, B_wo)
    return g * a + (1 - g) * b
```

```python
class Asm:
    def __init__(self):
        self.l = []
    def __call__(self, s=""):
        for line in s.split("\n"):
            line = line.strip()
            if not line: continue
            if line.endswith(":") and " " not in line:
                self.l.append(line)
            else:
                self.l.append("    " + line)
    def c(self, s):
        self.l.append("    ; " + s)
    def text(self):
        return "\n".join(self.l) + "\n"

def vr(b, n=1):
    return f"v{b}" if n == 1 else f"v[{b}:{b+n-1}]"
def sr(b, n=1):
    return f"s{b}" if n == 1 else f"s[{b}:{b+n-1}]"

def srd(a, dst, plo, nbytes, add=0):
    if add:
        a(f"s_add_u32 s{dst}, s{plo}, {hex(add)}")
        a(f"s_addc_u32 s{dst+1}, s{plo+1}, 0")
    else:
        a(f"s_mov_b32 s{dst}, s{plo}")
        a(f"s_mov_b32 s{dst+1}, s{plo+1}")
    a(f"s_mov_b32 s{dst+2}, {hex(nbytes)}")
    a(f"s_mov_b32 s{dst+3}, 0x20000")

def desc(name, nvgpr, nsgpr=102):
    acc = (nvgpr + 3) // 4 * 4
    return f""".p2align 6
.amdhsa_kernel {name}
  .amdhsa_next_free_vgpr {nvgpr}
  .amdhsa_next_free_sgpr {nsgpr}
  .amdhsa_accum_offset {acc}
  .amdhsa_group_segment_fixed_size 0
  .amdhsa_kernarg_size 120
  .amdhsa_user_sgpr_count 2
  .amdhsa_user_sgpr_kernarg_segment_ptr 1
  .amdhsa_system_sgpr_workgroup_id_x 1
  .amdhsa_float_denorm_mode_32 3
  .amdhsa_float_denorm_mode_16_64 3
.end_amdhsa_kernel
"""
```

```python
from asmlib import *
S = 2048; D = 1024
WS_Q  = 0
WS_O  = 0x400000
WS_XR = 0x800000
XR_PITCH = 4160
WS_ZT = 0xC40000
WS_KV = 0x1040000
WS_G  = 0x1080000
WS_END = 0x1090000
QSCALE = 1.4426950408889634 * (32 ** -0.5)
import struct
def f32hex(x):
    return hex(struct.unpack("<I", struct.pack("<f", x))[0])

def wg_map(a, rb, cb, t0, t1):
    a(f"""
    s_and_b32 s{t0}, s2, 7
    s_lshr_b32 s{t1}, s2, 3
    s_lshr_b32 s{rb}, s{t0}, 1
    s_lshl_b32 s{rb}, s{rb}, 2
    s_and_b32 s{cb}, s{t0}, 1
    s_lshl_b32 s{cb}, s{cb}, 3
    s_lshr_b32 s{t0}, s{t1}, 3
    s_add_u32 s{rb}, s{rb}, s{t0}
    s_and_b32 s{t0}, s{t1}, 7
    s_add_u32 s{cb}, s{cb}, s{t0}
    """)

XRING = 0
WRING = 65536
class Gemm:
    def __init__(self, a, R, with_kv):
        self.a = a; self.R = R; self.kv = with_kv
    def addr_setup(self, sW_rowbytes=2048):
        a, R = self.a, self.R
        L = R.vLane; T0, T1, T2 = R.vT0, R.vT1, R.vT2
        a(f"s_lshl_b32 s{R.sT0}, s{R.sRB}, 7")
        a(f"s_lshl_b32 s{R.sT1}, s{R.sW}, 4")
        a(f"s_add_u32 s{R.sT0}, s{R.sT0}, s{R.sT1}")
        a(f"v_lshrrev_b32 v{T0}, 3, v{L}")
        a(f"v_add_u32 v{T0}, s{R.sT0}, v{T0}")
        a(f"v_lshlrev_b32 v{T0}, 11, v{T0}")
        a(f"v_lshrrev_b32 v{T1}, 4, v{L}")
        a(f"v_and_b32 v{T2}, 7, v{L}")
        a(f"v_xor_b32 v{R.vX0}, v{T2}, v{T1}")
        a(f"v_xor_b32 v{R.vX1}, 4, v{R.vX0}")
        a(f"v_lshlrev_b32 v{R.vX0}, 4, v{R.vX0}")
        a(f"v_lshlrev_b32 v{R.vX1}, 4, v{R.vX1}")
        a(f"v_add_u32 v{R.vX0}, v{R.vX0}, v{T0}")
        a(f"v_add_u32 v{R.vX1}, v{R.vX1}, v{T0}")
        a(f"v_add_u32 v{R.vX1}, {8*2048}, v{R.vX1}")
        a(f"s_lshl_b32 s{R.sT0}, s{R.sW}, 3")
        a(f"v_lshrrev_b32 v{T0}, 3, v{L}")
        a(f"v_add_u32 v{T0}, s{R.sT0}, v{T0}")
        a(f"v_lshlrev_b32 v{T0}, 11, v{T0}")
        a(f"v_and_b32 v{T1}, 1, v{T1}")
        a(f"v_lshlrev_b32 v{T1}, 2, v{T1}")
        a(f"v_xor_b32 v{T1}, v{T2}, v{T1}")
        a(f"v_lshlrev_b32 v{T1}, 4, v{T1}")
        a(f"v_add_u32 v{T0}, v{T0}, v{T1}")
        a(f"s_lshl_b32 s{R.sT0}, s{R.sCB}, 7")
        a(f"v_add_u32 v{R.vWd}, s{R.sT0}, v{T0}")
        a(f"s_lshl_b32 s{R.sXdst}, s{R.sW}, 11")
        a(f"s_lshl_b32 s{R.sWdst}, s{R.sW}, 10")
        a(f"s_add_u32 s{R.sWdst}, s{R.sWdst}, {WRING}")
        a(f"v_and_b32 v{T0}, 31, v{L}")
        a(f"v_lshrrev_b32 v{T1}, 1, v{T0}")
        a(f"v_and_b32 v{T1}, 7, v{T1}")
        a(f"v_lshrrev_b32 v{T2}, 5, v{L}")
        a(f"v_xor_b32 v{T1}, v{T1}, v{T2}")
        a(f"v_lshlrev_b32 v{T1}, 4, v{T1}")
        a(f"s_lshl_b32 s{R.sT0}, s{R.sSG}, 5")
        a(f"v_add_u32 v{T0}, s{R.sT0}, v{T0}")
        a(f"v_lshlrev_b32 v{T0}, 7, v{T0}")
        a(f"v_add_u32 v{T0}, v{T0}, v{T1}")
        a(f"s_lshl_b32 s{R.sT0}, s{R.sKH}, 6")
        a(f"v_xor_b32 v{R.vB0}, s{R.sT0}, v{T0}")
        a(f"v_xor_b32 v{R.vB1}, 32, v{R.vB0}")
        a(f"v_and_b32 v{T0}, 15, v{L}")
        a(f"v_lshrrev_b32 v{T1}, 5, v{L}")
        a(f"v_lshlrev_b32 v{T1}, 3, v{T1}")
        a(f"v_lshrrev_b32 v{T2}, 2, v{T0}")
        a(f"v_add_u32 v{T1}, v{T1}, v{T2}")
        if self.kv:
            a(f"v_lshlrev_b32 v{R.vKV}, 4, v{T1}")
        a(f"v_lshlrev_b32 v{T1}, 7, v{T1}")
        a(f"v_bfe_u32 v{T2}, v{L}, 4, 1")
        a(f"v_lshlrev_b32 v{T2}, 1, v{T2}")
        a(f"v_bfe_u32 v{R.vA0}, v{T0}, 1, 1")
        a(f"v_add_u32 v{T2}, v{T2}, v{R.vA0}")
        a(f"v_bfe_u32 v{R.vA0}, v{T0}, 3, 1")
        a(f"v_lshlrev_b32 v{R.vA0}, 2, v{R.vA0}")
        a(f"v_xor_b32 v{T2}, v{T2}, v{R.vA0}")
        a(f"v_lshlrev_b32 v{T2}, 4, v{T2}")
        a(f"v_add_u32 v{T1}, v{T1}, v{T2}")
        a(f"v_and_b32 v{T2}, 1, v{T0}")
        a(f"v_lshlrev_b32 v{T2}, 3, v{T2}")
        a(f"v_add_u32 v{T1}, v{T1}, v{T2}")
        a(f"s_lshl_b32 s{R.sT0}, s{R.sKH}, 12")
        a(f"s_add_u32 s{R.sT0}, s{R.sT0}, {WRING}")
        a(f"v_add_u32 v{R.vA0}, s{R.sT0}, v{T1}")
        a(f"v_xor_b32 v{R.vA1}, 64, v{R.vA0}")
    def issue(self, st):
        a, R = self.a, self.R
        slot = st % 4
        a(f"s_add_u32 m0, s{R.sXdst}, {XRING + slot*16384}")
        a(f"s_mov_b32 s{R.sT0}, {st*128}")
        a(f"buffer_load_dwordx4 v{R.vX0}, s[{R.sXsrd}:{R.sXsrd+3}], s{R.sT0} offen lds")
        a(f"s_add_u32 m0, s{R.sXdst}, {XRING + slot*16384 + 1024}")
        a(f"s_mov_b32 s{R.sT1}, {st*64*2048}")
        a(f"buffer_load_dwordx4 v{R.vX1}, s[{R.sXsrd}:{R.sXsrd+3}], s{R.sT0} offen lds")
        a(f"s_add_u32 m0, s{R.sWdst}, {slot*8192}")
        a(f"s_nop 0")
        a(f"buffer_load_dwordx4 v{R.vWd}, s[{R.sWsrd}:{R.sWsrd+3}], s{R.sT1} offen lds")
    def reads(self, st):
        a, R = self.a, self.R
        slot = st % 4
        fb = R.vF + (st & 1) * R.fstride
        for k in range(2):
            b = fb + k * R.kstride
            vb = R.vB0 if k == 0 else R.vB1
            a(f"ds_read_b128 v[{b}:{b+3}], v{vb} offset:{slot*16384}")
            for ng, va in ((0, R.vA0), (1, R.vA1)):
                d = b + 4 + 4*ng
                o = slot*8192 + k*2048
                a(f"ds_read_b64_tr_b16 v[{d}:{d+1}], v{va} offset:{o}")
                a(f"ds_read_b64_tr_b16 v[{d+2}:{d+3}], v{va} offset:{o+512}")
            if self.kv:
                d = b + 12
                o = st*1024 + k*256
                a(f"ds_read_b64_tr_b16 v[{d}:{d+1}], v{R.vKV} offset:{o}")
                a(f"ds_read_b64_tr_b16 v[{d+2}:{d+3}], v{R.vKV} offset:{o+64}")
    def mfmas(self, st, first):
        a, R = self.a, self.R
        fb = R.vF + (st & 1) * R.fstride
        for k in range(2):
            b = fb + k * R.kstride
            for ng in range(2):
                acc = R.vAcc + 16*ng
                c = "0" if (first and k == 0) else f"v[{acc}:{acc+15}]"
                a(f"v_mfma_f32_32x32x16_bf16 v[{acc}:{acc+15}], v[{b+4+4*ng}:{b+7+4*ng}], v[{b}:{b+3}], {c}")
            if self.kv:
                acc = R.vAcc + 32
                c = "0" if (first and k == 0) else f"v[{acc}:{acc+15}]"
                a(f"v_mfma_f32_32x32x16_bf16 v[{acc}:{acc+15}], v[{b+12}:{b+15}], v[{b}:{b+3}], {c}")
    def loop(self, pre_issued=3):
        a = self.a
        NS = 16
        for st in range(NS):
            out = min(NS - 1, st + 2) - st
            a(f"s_waitcnt vmcnt({3*out})")
            a("s_barrier")
            if st + 3 < NS:
                self.issue(st + 3)
            self.reads(st)
            if st > 0:
                self.mfmas(st - 1, first=(st == 1))
            a("s_waitcnt lgkmcnt(0)")
        self.mfmas(NS - 1, first=False)
```

```python
import sys, importlib
sys.path.insert(0, "gen")
from common import *
NAME = "gated_mix__ssm_conv_h3__grouped_kv_mqa__prompt"
REF = open(f"cdna_kernels/{NAME}.s.ref").read()
def header():
    out = []
    for line in REF.splitlines():
        if line.startswith(";") and "@launch" not in line and "Override launch" not in line and "grid=ceil" not in line:
            out.append(line)
        elif not line.startswith(";"):
            break
    return "\n".join(out) + "\n"
def build(kernels, path):
    txt = header()
    for (name, body, nv, lds, block) in kernels:
        txt += f"; @launch kernel={name} grid=(256,1,1) block=({block},1,1) lds={lds}\n"
    txt += '.amdgcn_target "amdgcn-amd-amdhsa--gfx950"\n.text\n'
    for (name, body, nv, lds, block) in kernels:
        txt += f".globl {name}\n.p2align 8\n.type {name},@function\n{name}:\n{body}\n"
    txt += '.section .rodata,"a"\n'
    for (name, body, nv, lds, block) in kernels:
        txt += desc(name, nv)
    open(path, "w").write(txt)
if __name__ == "__main__":
    ks = []
    which = sys.argv[1].split(",") if len(sys.argv) > 1 else ["k1","k2","k3"]
    for k in which:
        m = importlib.import_module(k)
        name, body, nv, lds = getattr(m, "gen_"+k)()
        ks.append((name, body, nv, lds, 512))
    out = sys.argv[2] if len(sys.argv) > 2 else f"cdna_kernels/{NAME}.s"
    build(ks, out)
    print("wrote", out)
```
